```python
import torch

def _softmax(x, axis=-1):
    return torch.softmax(x, dim=axis)
def _gelu(x):
    return torch.nn.functional.gelu(x, approximate="tanh")
def _silu(x):
    return torch.nn.functional.silu(x)
def _sigmoid(x):
    return torch.sigmoid(x)
def _layernorm(x, axis=-1, eps=1e-5):
    m = x.mean(dim=axis, keepdim=True)
    v = x.var(dim=axis, keepdim=True, unbiased=False)
    return (x - m) / torch.sqrt(v + eps)
def _scatter_add(tgt, idx, src, axis=0):
    return tgt.clone().index_add_(axis, idx, src)
def _segment_sum(src, seg, n):
    out = torch.zeros((n,) + src.shape[1:], dtype=src.dtype)
    return out.index_add_(0, seg, src)
def _pad(x, pw):
    flat = tuple(v for pair in reversed(pw) for v in pair)
    return torch.nn.functional.pad(x, flat)

kernel_name = 'concat_heads__mha_block__sliding_block__prompt'

def setup_inputs():

    _w = (lambda a: (lambda t: t.to(torch.bfloat16) if t.is_floating_point() else t)(torch.as_tensor(a)))
    def _A_setup():
        B, S, D, H = 1, 2048, 640, 32
        return {
            "x": _w((lambda *s: torch.randn(*s, dtype=torch.bfloat16) * 0.2)(B, S, D)),
            "wqkv": _w((lambda *s: torch.randn(*s, dtype=torch.bfloat16) * 0.4)(D, 3 * D)),
            "wo": _w((lambda *s: torch.randn(*s, dtype=torch.bfloat16) * 0.1)(D, D)),
        }
    _A_in = _A_setup()

    def _B_setup():
        B, S, D = 1, 2048, 640
        return {
            "x": _w((lambda *s: torch.randn(*s, dtype=torch.bfloat16) * 0.4)(B, S, D)),
            "wqkv": _w((lambda *s: torch.randn(*s, dtype=torch.bfloat16) * 0.4)(D, 3 * D)),
            "wo": _w((lambda *s: torch.randn(*s, dtype=torch.bfloat16) * 0.05)(D, D)),
        }
    _B_in = _B_setup()

    return {
        "A_x": _A_in["x"],
        "A_wqkv": _A_in["wqkv"],
        "A_wo": _A_in["wo"],
        "B_x": _B_in["x"],
        "B_wqkv": _B_in["wqkv"],
        "B_wo": _B_in["wo"],
    }

def reference(A_x, A_wqkv, A_wo, B_x, B_wqkv, B_wo):
    def _A_ref(x, wqkv, wo):
        B, S, D = x.shape
        H = 32
        Dh = D // H
        qkv = (lambda x, *d: x.permute(*d))((x @ wqkv).reshape(B, S, 3, H, Dh), 2, 0, 3, 1, 4)
        q, k, v = qkv[0], qkv[1], qkv[2]
        scores = torch.einsum("bhqd,bhkd->bhqk", q, k) * (Dh ** -0.5)
        p = _softmax(scores, axis=-1)
        o = torch.einsum("bhqk,bhkd->bhqd", p, v)
        return (lambda x, *d: x.permute(*d))(o, 0, 2, 1, 3).reshape(B, S, D) @ wo

    def _B_ref(x, wqkv, wo):
        B, S, D = x.shape
        H = 32; Dh = D // H; W = 256
        qkv = (lambda x, *d: x.permute(*d))((x @ wqkv).reshape(B, S, 3, H, Dh), 2, 0, 3, 1, 4)
        q, k, v = qkv[0], qkv[1], qkv[2]
        scores = torch.einsum("bhqd,bhkd->bhqk", q, k) * (Dh ** -0.5)
        idx = torch.arange(S)
        mask = (idx[:, None] - idx[None, :] >= 0) & (idx[:, None] - idx[None, :] < W)
        scores = torch.where(mask[None, None], scores, -1e9)
        p = _softmax(scores, axis=-1)
        o = torch.einsum("bhqk,bhkd->bhqd", p, v)
        return (lambda x, *d: x.permute(*d))(o, 0, 2, 1, 3).reshape(B, S, D) @ wo

    a = _A_ref(A_x, A_wqkv, A_wo)
    b = _B_ref(B_x, B_wqkv, B_wo)
    return torch.concatenate([a, b], axis=-1)
```

```python
import struct
HEAD_STRIDE = 245760
Q_OFF = 163840
QKV_BYTES = 64 * HEAD_STRIDE
O_BASE = 0x1000000
O_BYTES = 2 * 64 * 40960
WOT_BASE = 0x1600000
WOT_BYTES = 2 * 20 * 40960
OUT_BYTES = 2048 * 1280 * 2
X_BYTES = 2048 * 640 * 2
W_BYTES = 640 * 1920 * 2
WO_BYTES = 640 * 640 * 2
def f2u(x): return struct.unpack("<I", struct.pack("<f", x))[0]
QSCALE = f2u((20 ** -0.5) * 1.4426950408889634)

class Asm:
    def __init__(self): self.L = []
    def __call__(self, s): self.L.append("  " + s)
    def label(self, s): self.L.append(s + ":")
    def raw(self, s): self.L.append(s)
    def text(self): return "\n".join(self.L) + "\n"
def vr(a, n): return f"v[{a}:{a+n-1}]"
def sr(a, n): return f"s[{a}:{a+n-1}]"
def kernel_begin(a, name):
    a.raw(f".globl {name}\n.p2align 8\n.type {name},@function\n{name}:")
def kd(name, vgpr, sgpr=96, accum=None):
    accum = accum if accum is not None else (vgpr + 3) // 4 * 4
    return f""".amdhsa_kernel {name}
  .amdhsa_next_free_vgpr {vgpr}
  .amdhsa_next_free_sgpr {sgpr}
  .amdhsa_accum_offset {accum}
  .amdhsa_group_segment_fixed_size 0
  .amdhsa_kernarg_size 72
  .amdhsa_user_sgpr_count 2
  .amdhsa_user_sgpr_kernarg_segment_ptr 1
  .amdhsa_system_sgpr_workgroup_id_x 1
.end_amdhsa_kernel
"""
def srd(a, d, lo, hi, nbytes, add=0):
    if add:
        a(f"s_add_u32 s{d}, s{lo}, {add:#x}")
        a(f"s_addc_u32 s{d+1}, s{hi}, 0")
    else:
        a(f"s_mov_b32 s{d}, s{lo}")
        a(f"s_mov_b32 s{d+1}, s{hi}")
    a(f"s_mov_b32 s{d+2}, {nbytes:#x}")
    a(f"s_mov_b32 s{d+3}, 0x20000")
```

```python
from common import *
K1_LDS = 147456
STAGE = 49152
def gen_k1(a, name="qkv_kernel"):
    kernel_begin(a, name)
    a("s_cmp_ge_u32 s2, 256")
    a(f"s_cbranch_scc1 L_{name}_end")
    a("s_load_dwordx8 s[4:11], s[0:1], 0")
    a("s_load_dwordx4 s[12:15], s[0:1], 32")
    a("s_load_dwordx2 s[16:17], s[0:1], 64")
    a("v_lshrrev_b32 v1, 6, v0")
    a("v_and_b32 v0, 63, v0")
    a("s_and_b32 s20, s2, 1")
    a("v_readfirstlane_b32 s23, v1")
    a("s_lshr_b32 s18, s2, 3")
    a("s_and_b32 s21, s18, 7")
    a("s_and_b32 s19, s2, 2")
    a("s_lshl_b32 s19, s19, 2")
    a("s_add_u32 s21, s21, s19")
    a("s_lshr_b32 s22, s18, 3")
    a("s_and_b32 s19, s2, 4")
    a("s_add_u32 s22, s22, s19")
    a("s_cmp_ge_u32 s23, 4")
    a(f"s_cbranch_scc0 L_{name}_compute")
    a("s_sub_u32 s23, s23, 4")
    a("v_lshrrev_b32 v6, 5, v0")
    a("v_and_b32 v7, 31, v0")
    a("s_mul_i32 s44, s22, 160")
    for p in range(2):
        a(f"v_add_u32 v8, {2*p}, v6")
        a("v_lshlrev_b32 v8, 2, v8")
        a("v_xor_b32 v8, v8, v7")
        a("v_mul_u32_u24 v9, 205, v8")
        a("v_lshrrev_b32 v9, 11, v9")
        a("v_min_u32 v9, 2, v9")
        a("v_mul_u32_u24 v9, 1120, v9")
        a("v_lshl_add_u32 v9, v8, 4, v9")
        a("v_mul_u32_u24 v10, 3840, v6")
        a(f"v_add3_u32 v{2+p}, v9, v10, s44")
    a("v_lshrrev_b32 v6, 3, v0")
    a("v_mul_u32_u24 v6, 1280, v6")
    a("v_and_b32 v7, 7, v0")
    a("v_lshrrev_b32 v8, 4, v0")
    for p in range(2):
        a(f"v_add_u32 v9, {4*p}, v8")
        a("v_xor_b32 v9, v9, v7")
        a(f"v_lshl_add_u32 v{4+p}, v9, 4, v6")
    a("s_mul_i32 s44, s23, 61440")
    a("s_lshl_b32 s45, s21, 7")
    a("s_lshl_b32 s46, s23, 5")
    a("s_add_u32 s45, s45, s46")
    a("s_mul_i32 s45, s45, 1280")
    a("s_lshl_b32 s46, s23, 13")
    a("s_lshl_b32 s47, s23, 12")
    a("s_add_u32 s47, s47, 32768")
    a("s_mov_b32 s48, 0")
    a("s_mov_b32 s49, 0")
    a("s_waitcnt lgkmcnt(0)")
    a("s_cmp_eq_u32 s20, 0")
    a("s_cselect_b32 s24, s4, s10")
    a("s_cselect_b32 s25, s5, s11")
    a("s_cselect_b32 s28, s6, s12")
    a("s_cselect_b32 s29, s7, s13")
    a(f"s_mov_b32 s26, {X_BYTES:#x}")
    a("s_mov_b32 s27, 0x20000")
    a(f"s_mov_b32 s30, {W_BYTES:#x}")
    a("s_mov_b32 s31, 0x20000")
    a.label(f"L_{name}_ld_loop")
    a("s_cmp_lt_u32 s49, 2")
    a(f"s_cbranch_scc1 L_{name}_ld_issue")
    a("s_waitcnt vmcnt(12)")
    a("s_barrier")
    a.label(f"L_{name}_ld_issue")
    a("s_add_u32 s50, s48, s46")
    a("s_add_u32 s51, s48, s47")
    for j in range(4):
        a(f"s_add_u32 m0, s51, {j*1024}")
        a(f"s_add_u32 s52, s45, {j*10240}")
        a(f"buffer_load_dwordx4 v{4+(j&1)}, s[24:27], s52 offen lds")
    for j in range(8):
        a(f"s_add_u32 m0, s50, {j*1024}")
        a(f"s_add_u32 s52, s44, {j*7680}")
        a(f"buffer_load_dwordx4 v{2+(j&1)}, s[28:31], s52 offen lds")
    a(f"s_add_u32 s44, s44, {64*3840}")
    a("s_add_u32 s45, s45, 128")
    a(f"s_add_u32 s48, s48, {STAGE}")
    a(f"s_cmp_eq_u32 s48, {3*STAGE}")
    a("s_cselect_b32 s48, 0, s48")
    a("s_add_u32 s49, s49, 1")
    a("s_cmp_lt_u32 s49, 10")
    a(f"s_cbranch_scc1 L_{name}_ld_loop")
    a("s_lshl_b32 s44, s2, 2")
    a("s_add_u32 s44, s44, s23")
    a("s_cmp_lt_u32 s44, 800")
    a(f"s_cbranch_scc1 L_{name}_wo")
    a("s_waitcnt vmcnt(12)")
    a("s_barrier")
    a("s_waitcnt vmcnt(0)")
    a("s_barrier")
    a("s_endpgm")
    a.label(f"L_{name}_wo")
    a("s_cmp_lt_u32 s44, 400")
    a("s_cselect_b32 s36, s8, s14")
    a("s_cselect_b32 s37, s9, s15")
    a("s_cselect_b32 s45, 0, 400")
    a(f"s_mov_b32 s38, {WO_BYTES:#x}")
    a("s_mov_b32 s39, 0x20000")
    srd(a, 40, 16, 17, WOT_BYTES, WOT_BASE)
    a("s_sub_u32 s45, s44, s45")
    a("s_mul_i32 s46, s45, 3277")
    a("s_lshr_b32 s46, s46, 16")
    a("s_mul_i32 s47, s46, 20")
    a("s_sub_u32 s47, s45, s47")
    a("v_and_b32 v6, 31, v0")
    a("v_and_b32 v7, 3, v6")
    a("v_lshrrev_b32 v8, 3, v6")
    a("v_lshl_add_u32 v7, v8, 2, v7")
    a("v_and_b32 v8, 4, v6")
    a("v_lshl_add_u32 v7, v8, 2, v7")
    a("v_lshlrev_b32 v7, 1, v7")
    a("v_lshrrev_b32 v8, 5, v0")
    a("s_lshl_b32 s50, s46, 6")
    a("s_cmp_lt_u32 s47, 16")
    a(f"s_cbranch_scc0 L_{name}_wo2")
    a("v_mul_u32_u24 v8, 5120, v8")
    a("v_add_u32 v7, v7, v8")
    a("s_mul_i32 s51, s47, 51200")
    a("s_add_u32 s50, s50, s51")
    for f in range(2):
        for j in range(8):
            if (j & 3) == 0:
                a(f"s_add_u32 s52, s50, {f*25600 + (j>>2)*10240}")
            a(f"buffer_load_ushort v{24+8*f+j}, v7, s[36:39], s52 offen offset:{(j&3)*1280}")
    a(f"s_branch L_{name}_wo3")
    a.label(f"L_{name}_wo2")
    a("v_mul_u32_u24 v8, 2560, v8")
    a("v_add_u32 v7, v7, v8")
    a("s_sub_u32 s51, s47, 16")
    a("s_mul_i32 s51, s51, 204800")
    a("s_add_u32 s50, s50, s51")
    for f in range(2):
        for j in range(8):
            if (j & 1) == 0:
                a(f"s_add_u32 s52, s50, {f*102400 + (j>>1)*25600 + 16*1280}")
            a(f"buffer_load_ushort v{24+8*f+j}, v7, s[36:39], s52 offen offset:{(j&1)*1280}")
    a.label(f"L_{name}_wo3")
    a("s_waitcnt vmcnt(28)")
    a("s_barrier")
    a("s_waitcnt vmcnt(16)")
    a("s_barrier")
    a("s_lshl_b32 s50, s44, 11")
    a("v_lshlrev_b32 v6, 4, v0")
    a("s_waitcnt vmcnt(0)")
    for i in range(8): a(f"v_lshl_or_b32 v{16+i}, v{25+2*i}, 16, v{24+2*i}")
    a("buffer_store_dwordx4 v[16:19], v6, s[40:43], s50 offen")
    a("buffer_store_dwordx4 v[20:23], v6, s[40:43], s50 offen offset:1024")
    a("s_endpgm")
    a.label(f"L_{name}_compute")
    ACC = 128; FR = 64
    XB, WB, XA, WA = 32, 36, 40, 44
    a("s_and_b32 s44, s23, 1")
    a("s_lshr_b32 s45, s23, 1")
    a("v_and_b32 v2, 31, v0")
    a("v_lshrrev_b32 v3, 5, v0")
    a("v_bfe_u32 v4, v0, 1, 3")
    a("v_xor_b32 v4, v4, v3")
    a("s_lshl_b32 s46, s44, 13")
    a("s_add_u32 s46, s46, 32768")
    a("v_lshl_add_u32 v5, v2, 7, s46")
    for kk in range(4):
        a(f"v_xor_b32 v6, {2*kk}, v4")
        a(f"v_lshl_add_u32 v{XB+kk}, v6, 4, v5")
    a("v_bfe_u32 v6, v0, 2, 2")
    a("v_and_b32 v7, 3, v0")
    a("v_bfe_u32 v8, v0, 4, 1")
    a("v_lshl_add_u32 v9, v3, 3, v6")
    a("v_lshlrev_b32 v9, 9, v9")
    a("v_lshlrev_b32 v10, 6, v6")
    for i in range(128): a(f"v_mov_b32 v{ACC+i}, 0")
    a("s_mov_b32 s48, 0")
    a("s_mov_b32 s49, 0")
    a("s_cmp_eq_u32 s45, 0")
    a(f"s_cbranch_scc0 L_{name}_c1")
    for fn in range(2):
        if fn == 1: a.label(f"L_{name}_c1")
        if fn == 0:
            a("v_mul_u32_u24 v11, 160, v8")
            a("v_lshl_add_u32 v11, v7, 3, v11")
            for ft in range(4):
                a(f"v_add_u32 v12, {40*ft}, v11")
                a("v_xor_b32 v12, v12, v10")
                a(f"v_add_u32 v{WB+ft}, v12, v9")
        else:
            a("v_mul_u32_u24 v11, 80, v8")
            a("v_lshrrev_b32 v12, 1, v7")
            a("v_mul_u32_u24 v12, 40, v12")
            a("v_and_b32 v13, 1, v7")
            a("v_mul_u32_u24 v13, 160, v13")
            a("v_add3_u32 v11, v11, v12, v13")
            a("v_add_u32 v11, 32, v11")
            a("v_xor_b32 v11, v11, v10")
            a(f"v_add_u32 v{WB}, v11, v9")
            a("v_lshlrev_b32 v11, 5, v8")
            a("v_lshl_add_u32 v11, v7, 3, v11")
            for j in range(3):
                a(f"v_add_u32 v12, {320+64*j}, v11")
                a("v_xor_b32 v12, v12, v10")
                a(f"v_add_u32 v{WB+1+j}, v12, v9")
        for i in range(8): a(f"v_mov_b32 v{XA+i}, v{XB+i}")
        def xf(s, st): return FR + 24*s + 4*st
        def wf(s, ft): return FR + 24*s + 8 + 4*ft
        def reads(s, kk):
            R = []
            R.append(f"ds_read_b128 {vr(xf(s,0),4)}, v{XA+kk}")
            for ft in range(4):
                for e in range(2):
                    R.append(f"ds_read_b64_tr_b16 {vr(wf(s,ft)+2*e,2)}, v{WA+ft} offset:{kk*8192+e*2048}")
                if ft == 0: R.append(f"ds_read_b128 {vr(xf(s,1),4)}, v{XA+kk} offset:4096")
            return R
        def mfmas(s):
            M = []
            for ft in range(4):
                for st in range(2):
                    d = vr(ACC + 16*(st*4+ft), 16)
                    if fn == 1 and ft > 0: M.append(f"v_mfma_f32_32x32x16_bf16 {d}, {vr(xf(s,st),4)}, {vr(wf(s,ft),4)}, {d}")
                    else: M.append(f"v_mfma_f32_32x32x16_bf16 {d}, {vr(wf(s,ft),4)}, {vr(xf(s,st),4)}, {d}")
            return M
        def kstep(s, R):
            M = mfmas(s)
            for i, m in enumerate(M):
                a(m)
                for r in R[2*i:2*i+2]: a(r)
        a("s_barrier")
        for r in reads(0, 0): a(r)
        a.raw(".p2align 6")
        a.label(f"L_{name}_loop{fn}")
        for kk in range(3):
            a("s_waitcnt lgkmcnt(0)")
            kstep(kk & 1, reads((kk+1) & 1, kk+1))
        a(f"s_add_u32 s48, s48, {STAGE}")
        a(f"s_cmp_eq_u32 s48, {3*STAGE}")
        a("s_cselect_b32 s48, 0, s48")
        a("s_add_u32 s49, s49, 1")
        a("s_cmp_eq_u32 s49, 10")
        a("s_waitcnt lgkmcnt(0)")
        a(f"s_cbranch_scc1 L_{name}_last{fn}")
        for i in range(8): a(f"v_add_u32 v{XA+i}, s48, v{XB+i}")
        a("s_barrier")
        kstep(1, reads(0, 0))
        a(f"s_branch L_{name}_loop{fn}")
        a.label(f"L_{name}_last{fn}")
        kstep(1, [])
        srd(a, 32, 16, 17, QKV_BYTES)
        a("s_lshl_b32 s50, s20, 5")
        a("s_lshl_b32 s51, s22, 2")
        a("s_add_u32 s50, s50, s51")
        a(f"s_mul_i32 s50, s50, {HEAD_STRIDE}")
        a("s_lshl_b32 s51, s21, 2")
        a("s_lshl_b32 s52, s44, 1")
        a("s_add_u32 s51, s51, s52")
        a(f"s_mov_b32 s53, {QSCALE:#x}")
        a("v_lshrrev_b32 v4, 1, v0")
        a("v_xor_b32 v4, v4, v0")
        a("v_and_b32 v4, 4, v4")
        a("v_mul_u32_u24 v4, 3, v4")
        a("v_xor_b32 v4, v4, v0")
        if fn == 0:
            a("v_lshlrev_b32 v5, 4, v0")
            a("v_lshlrev_b32 v6, 4, v4")
            a("s_mul_i32 s54, s51, 1280")
            a(f"s_add_u32 s54, s54, {Q_OFF}")
            a("s_add_u32 s54, s54, s50")
            a("s_mul_i32 s55, s51, 2560")
            a("s_add_u32 s55, s55, s50")
            a("s_nop 7")
            for ft in range(4):
                for st in range(2):
                    d = ACC + 16*(st*4+ft)
                    for i in range(8): a(f"v_mul_f32 v{d+i}, s53, v{d+i}")
                    for i in range(4): a(f"v_cvt_pk_bf16_f32 v{d+8+i}, v{d+8+2*i}, v{d+9+2*i}")
                    for i in range(4): a(f"v_cvt_pk_bf16_f32 v{d+i}, v{d+2*i}, v{d+1+2*i}")
                    a(f"buffer_store_dwordx4 {vr(d+8,4)}, v6, s[32:35], s55 offen offset:{st*2560}")
                    a(f"buffer_store_dwordx4 {vr(d,4)}, v5, s[32:35], s54 offen offset:{st*1280}")
                if ft < 3:
                    a(f"s_add_u32 s54, s54, {HEAD_STRIDE}")
                    a(f"s_add_u32 s55, s55, {HEAD_STRIDE}")
        else:
            a("v_cmp_gt_u32 vcc, 32, v0")
            a("v_and_b32 v5, 31, v4")
            a("v_lshlrev_b32 v5, 3, v5")
            a("s_mul_i32 s54, s51, 2560")
            a("s_add_u32 s54, s54, 1024")
            a("v_add_u32 v5, s54, v5")
            a("v_add_u32 v6, 2560, v5")
            a("s_mul_i32 s54, s51, 1280")
            a(f"s_add_u32 s54, s54, {Q_OFF+1024}")
            a("v_lshl_add_u32 v7, v2, 3, s54")
            a("v_add_u32 v8, 1280, v7")
            a("v_cndmask_b32 v5, v5, v7, vcc")
            a("v_cndmask_b32 v6, v6, v8, vcc")
            a("v_mov_b32 v7, 1.0")
            a("v_mov_b32 v8, s53")
            a("v_cndmask_b32 v7, v7, v8, vcc")
            for j in range(3):
                a(f"v_add_u32 v8, {32*j}, v2")
                a("v_mul_u32_u24 v9, 205, v8")
                a("v_lshrrev_b32 v9, 12, v9")
                a("v_mul_u32_u24 v10, 20, v9")
                a("v_sub_u32 v10, v8, v10")
                a(f"v_mul_u32_u24 v9, {HEAD_STRIDE}, v9")
                a("v_lshl_add_u32 v9, v10, 4, v9")
                a("v_mul_u32_u24 v10, 320, v3")
                a(f"v_add_u32 v{12+j}, v9, v10")
            a("v_cmp_gt_u32 vcc, 16, v2")
            a("v_mov_b32 v8, 0x7f000000")
            a("s_mul_i32 s55, s51, 2560")
            a("s_add_u32 s55, s55, 1280")
            a("v_cndmask_b32 v14, v8, v14, vcc")
            a("s_add_u32 s55, s55, s50")
            for st in range(2):
                d = ACC + 16*(st*4)
                for i in range(16): a(f"v_mul_f32 v{d+i}, v7, v{d+i}")
                for i in range(8): a(f"v_cvt_pk_bf16_f32 v{d+i}, v{d+2*i}, v{d+1+2*i}")
            for i in range(4):
                for st in range(2):
                    d = ACC + 16*(st*4)
                    a(f"buffer_store_dwordx2 {vr(d+2*i,2)}, v{5+st}, s[32:35], s50 offen")
                if i < 3: a(f"s_add_u32 s50, s50, {HEAD_STRIDE}")
            for j in range(3):
                for st in range(2):
                    d = ACC + 16*(st*4+1+j)
                    for g in range(2):
                        for i in range(4): a(f"v_cvt_pk_bf16_f32 v{d+8*g+i}, v{d+8*g+2*i}, v{d+8*g+1+2*i}")
                        a(f"buffer_store_dwordx4 {vr(d+8*g,4)}, v{12+j}, s[32:35], s55 offen offset:{st*2560+g*640}")
        a("s_endpgm")
    a.label(f"L_{name}_end")
    a("s_endpgm")
    return kd(name, 256)
```

```python
from common import *
K2_LDS = 163840
UNIT = 40960
def gen_k2(a, name="attn_kernel"):
    QA1, QA2L, QA2H, QB1, QB2 = 16, 20, 22, 24, 28
    KB = [32, 36]; K2B = [40, 42]; IDX = 44
    AK, AK2, AV, NK, NK2, NV = 45, 46, 47, 48, 49, 50
    LK, LK2, LV, LK2S = 51, 52, 53, 54
    VB = [56, 64]; O = 72; NEG = 88; CD = 104; CF = 120
    S = [136, 152, 168, 184]
    BK1 = 200; BK2 = 236
    VM = 2
    kernel_begin(a, name)
    a("s_cmp_ge_u32 s2, 256")
    a(f"s_cbranch_scc1 L_{name}_end")
    a("s_load_dwordx2 s[16:17], s[0:1], 64")
    a("v_lshrrev_b32 v1, 6, v0")
    a("v_and_b32 v0, 63, v0")
    a("s_and_b32 s20, s2, 7")
    a("v_readfirstlane_b32 s23, v1")
    a("s_lshl_b32 s20, s20, 2")
    a("s_lshr_b32 s18, s2, 3")
    a("s_and_b32 s19, s18, 3")
    a("s_add_u32 s20, s20, s19")
    a("s_lshr_b32 s21, s18, 2")
    a(f"s_mul_i32 s24, s20, {HEAD_STRIDE}")
    a(f"s_add_u32 s25, s24, {32*HEAD_STRIDE}")
    a("s_lshl_b32 s22, s21, 3")
    a("s_add_u32 s22, s22, s23")
    a(f"v_lshlrev_b32 v{LK}, 4, v0")
    a("v_and_b32 v2, 31, v0")
    a("v_lshrrev_b32 v3, 5, v0")
    a("v_lshlrev_b32 v6, 30, v3")
    a("v_lshl_add_u32 v4, v2, 3, v6")
    a("v_xor_b32 v5, 0x40000000, v4")
    a("s_mul_i32 s26, s22, 1280")
    a(f"s_add_u32 s26, s26, {Q_OFF}")
    a("s_add_u32 s27, s26, s25")
    a("s_add_u32 s26, s26, s24")
    a("s_mul_i32 s28, s23, 5120")
    a("s_mul_i32 s29, s21, 20480")
    a("s_add_u32 s29, s29, s28")
    a("s_cmp_lt_u32 s29, 20480")
    a("s_cselect_b32 s30, 0, 20480")
    a("s_sub_u32 s29, s29, s30")
    a("s_add_u32 s29, s29, s25")
    a("s_add_u32 s30, s24, s28")
    a("s_waitcnt lgkmcnt(0)")
    srd(a, 32, 16, 17, QKV_BYTES)
    srd(a, 36, 16, 17, O_BYTES, O_BASE)
    a(f"buffer_load_dwordx4 {vr(QB1,4)}, v{LK}, s[32:35], s27 offen")
    a(f"buffer_load_dwordx2 {vr(QB2,2)}, v4, s[32:35], s27 offen offset:1024")
    def dma(soff, ldsbase):
        a(f"s_add_u32 m0, s28, {ldsbase}")
        a("s_nop 0")
        for j in range(4):
            a(f"buffer_load_dwordx4 v{LK}, s[32:35], s{soff} offen offset:{j*1024} lds")
        a(f"s_add_u32 m0, s28, {ldsbase+4096}")
        a(f"s_add_u32 s31, s{soff}, 4096")
        a(f"buffer_load_dwordx4 v{LK}, s[32:35], s31 offen lds")
    dma(29, 0)
    a(f"buffer_load_dwordx4 {vr(QA1,4)}, v{LK}, s[32:35], s26 offen")
    a(f"buffer_load_dwordx2 {vr(QA2L,2)}, v4, s[32:35], s26 offen offset:1024")
    a(f"buffer_load_dwordx2 {vr(QA2H,2)}, v5, s[32:35], s26 offen offset:1024")
    for u in range(3):
        dma(30, UNIT*(u+1))
        a(f"s_add_u32 s30, s30, {UNIT}")
    a(f"v_mov_b32 v{IDX}, 0xdddd")
    a(f"v_lshlrev_b32 v{LK2S}, 3, v2")
    a(f"v_add_u32 v{LK2S}, 1024, v{LK2S}")
    a(f"v_mul_u32_u24 v6, 2560, v3")
    a(f"v_add_u32 v{LK2}, v{LK2S}, v6")
    a("v_add_u32 v6, 12, v2")
    a("v_lshrrev_b32 v6, 5, v6")
    a("v_lshlrev_b32 v6, 1, v6")
    a("v_sub_u32 v6, v2, v6")
    a("v_mul_u32_u24 v7, 320, v3")
    a("v_lshl_add_u32 v6, v6, 4, v7")
    a(f"v_add_u32 v{LV}, 1280, v6")
    a("s_mov_b32 s40, 0x0033ffff")
    a("s_mov_b32 s41, 0x0033ffff")
    for i in range(16): a(f"v_mov_b32 v{VB[0]+i}, 0")
    a("s_mov_b32 exec_lo, 0x00440000")
    a("s_mov_b32 exec_hi, 0x00440000")
    for i in range(16): a(f"v_mov_b32 v{VB[0]+i}, 0x3f803f80")
    a("s_mov_b64 exec, -1")
    a("v_mov_b32 v8, 0xff800000")
    for r in range(16):
        a(f"v_mov_b32 v{CD+r}, 0")
        a(f"v_mov_b32 v{CF+r}, v8")
    for r in range(16):
        kr = (r & 7) + 16*(r >> 3)
        m = [(1 << min(32, kr + 8*h)) - 1 for h in range(2)]
        a(f"s_mov_b32 exec_lo, {m[0]:#x}")
        a(f"s_mov_b32 exec_hi, {m[1]:#x}")
        a(f"v_mov_b32 v{CD+r}, v8")
        a(f"v_mov_b32 v{CF+r}, 0")
    a("s_mov_b64 exec, -1")
    a("s_sub_u32 s42, 8, s23")
    a("s_cmp_eq_u32 s21, 0")
    a("s_cselect_b32 s42, s42, 0")
    for i in range(9):
        a(f"s_cmp_gt_u32 s42, {i}")
        a("s_cselect_b32 s43, 0xff7f, 0")
        a(f"v_mov_b32 v{BK2+2*i}, s43")
        a(f"v_mov_b32 v{BK2+2*i+1}, 0")
    a("s_mul_i32 s43, s23, 2560")
    a(f"v_add_u32 v{AK}, s43, v{LK}")
    a(f"v_add_u32 v{AK2}, s43, v{LK2S}")
    a(f"v_add_u32 v{AV}, s43, v{LV}")
    a("v_mul_u32_u24 v9, 0x3f80, v3")
    for i in range(16): a(f"v_mov_b32 v{O+i}, 0")
    a("s_waitcnt vmcnt(18)")
    a(f"v_or_b32 v{QB2}, v{QB2}, v9")
    a("s_barrier")
    order = list(range(8, -1, -1))
    for i in order[:5]:
        a(f"ds_read_b128 {vr(BK1+4*i,4)}, v{AK} offset:{i*2560}")
    a("s_mov_b32 exec_hi, 0")
    for i in order:
        a(f"ds_read_b64 {vr(BK2+2*i,2)}, v{AK2} offset:{i*2560}")
    a("s_mov_b64 exec, -1")
    a("s_waitcnt lgkmcnt(8)")
    for i in order[5:]:
        a(f"ds_read_b128 {vr(BK1+4*i,4)}, v{AK} offset:{i*2560}")
    def vread(buf, areg, off):
        a("s_mov_b64 exec, s[40:41]")
        a(f"ds_read_b128 {vr(buf,4)}, v{areg} offset:{off}")
        a(f"ds_read_b128 {vr(buf+4,4)}, v{areg} offset:{off+640}")
        a("s_mov_b64 exec, -1")
    def bC(i, p2):
        if i == 8: return vr(CD,16)
        if i == 0: return vr(CF,16)
        return vr(NEG,16) if p2 else "0"
    def bqk1(s, p2):
        i = order[s]
        return f"v_mfma_f32_32x32x16_bf16 {vr(S[s%4],16)}, {vr(BK1+4*i,4)}, {vr(QB1,4)}, {bC(i,p2)}"
    def bqk2(s):
        i = order[s]
        return f"v_mfma_f32_32x32x8_bf16 {vr(S[s%4],16)}, {vr(BK2+2*i,2)}, {vr(QB2,2)}, {vr(S[s%4],16)}"
    def maxes(sb, first):
        L = []
        for k in range(8):
            if first and k == 0: L.append(f"v_max_f32 v{VM}, v{sb}, v{sb+1}")
            else: L.append(f"v_max3_f32 v{VM}, v{sb+2*k}, v{sb+2*k+1}, v{VM}")
        return L
    a("s_waitcnt lgkmcnt(4)")
    for s in range(11):
        if s == 5: a("s_waitcnt lgkmcnt(0)")
        mx = maxes(S[(s-2)%4], s == 2) if s >= 2 else []
        if s == 2: a("s_nop 9")
        if s < 9:
            a(bqk1(s, False))
            for x in mx[:4]: a(x)
            a(bqk2(s))
            for x in mx[4:]: a(x)
        else:
            if s == 10: a("s_nop 3")
            for x in mx: a(x)
    vread(VB[0], AV, order[0]*2560)
    def crossmax_neg():
        a(f"v_mov_b32 v3, v{VM}")
        a("s_nop 1")
        a(f"v_permlane32_swap_b32 v{VM}, v3")
        a("s_nop 1")
        a(f"v_max_f32 v{VM}, v{VM}, v3")
        a(f"v_sub_f32 v{VM}, 0, v{VM}")
    crossmax_neg()
    for r in range(16): a(f"v_add_f32 v{CD+r}, v{CD+r}, v{VM}")
    for r in range(16): a(f"v_mov_b32 v{NEG+r}, v{VM}")
    a(bqk1(0, True)); a(bqk2(0))
    for r in range(16): a(f"v_add_f32 v{CF+r}, v{CF+r}, v{VM}")
    def pv(sb, vb, g): return f"v_smfmac_f32_32x32x32_bf16 {vr(O,16)}, {vr(vb+4*g,4)}, {vr(sb+8*g,8)}, v{IDX}"
    def exps(sb, k): return [f"v_exp_f32 v{sb+4*k+j}, v{sb+4*k+j}" for j in range(4)]
    for s in range(9):
        sb = S[s%4]
        M = [bqk1(s+1, True), bqk2(s+1)] if s < 8 else [None, None]
        M += [pv(S[(s-1)%4], VB[(s-1)%2], 0), pv(S[(s-1)%4], VB[(s-1)%2], 1)] if s > 0 else [None, None]
        if s > 0: a("s_waitcnt lgkmcnt(0)")
        for k in range(4):
            if M[k]: a(M[k])
            if k == 0 and s > 0: vread(VB[s%2], AV, order[s]*2560)
            for x in exps(sb, k): a(x)
    a("s_waitcnt lgkmcnt(0)")
    a("s_nop 0")
    a(pv(S[0], VB[0], 0)); a(pv(S[0], VB[0], 1))
    def ostore(b):
        a(f"v_rcp_f32 v3, v{O+10}")
        a("s_mul_i32 s44, s22, 40960")
        if b: a(f"s_add_u32 s44, s44, {64*40960}")
        a("s_lshl_b32 s45, s20, 10")
        a("s_add_u32 s45, s45, s44")
        a("s_lshr_b32 s46, s20, 2")
        a("s_lshl_b32 s46, s46, 10")
        a("s_and_b32 s47, s20, 3")
        a("s_lshl_b32 s47, s47, 2")
        a("s_add_u32 s46, s46, s47")
        a("s_add_u32 s46, s46, s44")
        a("s_add_u32 s46, s46, 32768")
        for i in range(10): a(f"v_mul_f32 v{O+i}, v{O+i}, v3")
        for i in range(5): a(f"v_cvt_pk_bf16_f32 v{4+i}, v{O+2*i}, v{O+2*i+1}")
        a(f"buffer_store_dwordx4 v[4:7], v{LK}, s[36:39], s45 offen")
        a(f"buffer_store_dword v8, v{LK}, s[36:39], s46 offen")
    a("s_waitcnt vmcnt(0)")
    a("s_barrier")
    dma(30, 0)
    a("s_nop 7")
    ostore(1)
    a("s_mov_b32 s50, 1")
    a("s_mov_b32 s51, 2")
    a.label(f"L_{name}_amax")
    a(f"s_mov_b32 s52, {UNIT}")
    a(f"v_mov_b32 v{VM}, 0xff800000")
    a.label(f"L_{name}_amax_loop")
    a(f"v_add_u32 v{AK}, s52, v{LK}")
    a(f"v_add_u32 v{AK2}, s52, v{LK2S}")
    a(f"ds_read_b128 {vr(KB[0],4)}, v{AK}")
    a(f"ds_read_b64 {vr(K2B[0],2)}, v{AK2}")
    a("s_add_u32 s52, s52, 2560")
    a(f"s_cmp_eq_u32 s52, {4*UNIT}")
    a("s_cselect_b32 s52, 0, s52")
    a("s_waitcnt lgkmcnt(0)")
    a(f"v_mfma_f32_32x32x16_bf16 {vr(S[0],16)}, {vr(KB[0],4)}, {vr(QA1,4)}, 0")
    a(f"v_mfma_f32_32x32x8_bf16 {vr(S[0],16)}, {vr(K2B[0],2)}, {vr(QA2L,2)}, {vr(S[0],16)}")
    a("s_sub_u32 s50, s50, 1")
    a("s_cmp_lg_u32 s50, 0")
    a("s_nop 10")
    for x in maxes(S[0], False): a(x)
    a(f"s_cbranch_scc1 L_{name}_amax_loop")
    a(f"v_add_u32 v{AK}, {UNIT}, v{LK}")
    a(f"v_add_u32 v{AK2}, {UNIT}, v{LK2}")
    a(f"v_add_u32 v{AV}, {UNIT}, v{LV}")
    a(f"ds_read_b128 {vr(KB[0],4)}, v{AK}")
    a(f"ds_read_b64 {vr(K2B[0],2)}, v{AK2}")
    a(f"ds_read_b128 {vr(KB[1],4)}, v{AK} offset:2560")
    crossmax_neg()
    for r in range(16): a(f"v_mov_b32 v{NEG+r}, v{VM}")
    for r in range(16): a(f"v_mov_b32 v{O+r}, 0")
    a("s_waitcnt lgkmcnt(0)")
    a(f"v_mfma_f32_32x32x16_bf16 {vr(S[0],16)}, {vr(KB[0],4)}, {vr(QA1,4)}, {vr(NEG,16)}")
    a(f"v_mfma_f32_32x32x8_bf16 {vr(S[0],16)}, {vr(K2B[0],2)}, {vr(QA2L,2)}, {vr(S[0],16)}")
    for r in range(16): a(f"v_mov_b32 v{S[3]+r}, 0")
    a("s_mov_b32 s53, 0")
    a(f"s_mov_b32 s52, {2*UNIT}")
    a.raw(".p2align 6")
    a.label(f"L_{name}_aloop")
    for j in range(16):
        sb = S[j%4]; sn = S[(j+1)%4]; sp = S[(j-1)%4]
        t1 = j + 1
        q2 = QA2H if (t1 & 1) else QA2L
        M = [f"v_mfma_f32_32x32x16_bf16 {vr(sn,16)}, {vr(KB[t1%2],4)}, {vr(QA1,4)}, {vr(NEG,16)}",
             f"v_mfma_f32_32x32x8_bf16 {vr(sn,16)}, {vr(K2B[(t1>>1)%2],2)}, {vr(q2,2)}, {vr(sn,16)}",
             pv(sp, VB[(j-1)%2], 0), pv(sp, VB[(j-1)%2], 1)]
        if j == 14:
            a("s_cmp_eq_u32 s53, s51")
            a(f"s_cbranch_scc0 L_{name}_nobar")
            a("s_waitcnt vmcnt(0)")
            a("s_barrier")
            a.label(f"L_{name}_nobar")
        a("s_waitcnt lgkmcnt(0)")
        for k in range(4):
            a(M[k])
            if k == 0:
                t2 = j + 2
                ra, ra2, off = (AK, AK2, t2*2560) if t2 < 16 else (NK, NK2, (t2-16)*2560)
                a(f"ds_read_b128 {vr(KB[t2%2],4)}, v{ra} offset:{off}")
                if j % 2 == 0: a(f"ds_read_b64 {vr(K2B[(t2>>1)%2],2)}, v{ra2} offset:{off}")
            if k == 1: vread(VB[j%2], AV, j*2560)
            for x in exps(sb, k): a(x)
            if j == 0 and k == 2:
                a(f"v_add_u32 v{NK}, s52, v{LK}")
                a(f"v_add_u32 v{NK2}, s52, v{LK2}")
                a(f"v_add_u32 v{NV}, s52, v{LV}")
            if j == 15 and k == 2:
                a(f"v_mov_b32 v{AK}, v{NK}")
                a(f"v_mov_b32 v{AK2}, v{NK2}")
                a(f"v_mov_b32 v{AV}, v{NV}")
                a(f"s_add_u32 s52, s52, {UNIT}")
                a(f"s_cmp_eq_u32 s52, {4*UNIT}")
                a("s_cselect_b32 s52, 0, s52")
                a("s_add_u32 s53, s53, 1")
                a("s_cmp_lt_u32 s53, 4")
    a(f"s_cbranch_scc1 L_{name}_aloop")
    a("s_waitcnt lgkmcnt(0)")
    a("s_nop 0")
    a(pv(S[3], VB[1], 0)); a(pv(S[3], VB[1], 1))
    a("s_nop 15")
    a(f"v_mul_f32 v3, 0, v{O}")
    for i in range(1, 10): a(f"v_fma_f32 v3, v{O+i}, 0, v3")
    a(f"v_add_f32 v3, v3, v{O+10}")
    a("s_mov_b32 s44, 0x71800000")
    a("v_cmp_ngt_f32 vcc, s44, v3")
    a("s_cmp_eq_u32 s51, 2")
    a(f"s_cbranch_scc0 L_{name}_fin")
    a("s_nop 2")
    a(f"s_cbranch_vccz L_{name}_fin")
    a("s_mov_b32 s50, 64")
    a("s_mov_b32 s51, 99")
    a(f"s_branch L_{name}_amax")
    a.label(f"L_{name}_fin")
    ostore(0)
    a.label(f"L_{name}_end")
    a("s_endpgm")
    return kd(name, 256)
```

```python
from common import *
K3_LDS = 81920 + 40960
def gen_k3(a, name="oproj_kernel"):
    WF = 32; ACC = 112; OF = 144
    kernel_begin(a, name)
    a("s_cmp_ge_u32 s2, 256")
    a(f"s_cbranch_scc1 L_{name}_end")
    a("s_load_dwordx2 s[16:17], s[0:1], 64")
    a("s_load_dwordx2 s[14:15], s[0:1], 48")
    a("v_lshrrev_b32 v1, 6, v0")
    a("v_and_b32 v0, 63, v0")
    a("s_and_b32 s20, s2, 1")
    a("v_readfirstlane_b32 s23, v1")
    a("s_lshr_b32 s18, s2, 3")
    a("s_and_b32 s22, s18, 3")
    a("s_lshr_b32 s21, s18, 2")
    a("s_and_b32 s19, s2, 6")
    a("s_lshl_b32 s19, s19, 2")
    a("s_add_u32 s21, s21, s19")
    a("s_cmp_ge_u32 s23, 5")
    a("s_cselect_b32 s24, 1, 0")
    a("s_mul_i32 s25, s24, 5")
    a("s_sub_u32 s25, s23, s25")
    a("v_lshlrev_b32 v2, 4, v0")
    a("s_lshl_b32 s26, s20, 5")
    a("s_add_u32 s26, s26, s21")
    a("s_mul_i32 s26, s26, 81920")
    a("s_lshl_b32 s27, s23, 13")
    a("s_add_u32 s26, s26, s27")
    a("s_mul_i32 s28, s20, 20")
    a("s_mul_i32 s29, s22, 5")
    a("s_add_u32 s28, s28, s29")
    a("s_add_u32 s28, s28, s25")
    a("s_mul_i32 s28, s28, 40960")
    a("s_mul_i32 s29, s24, 20480")
    a("s_add_u32 s28, s28, s29")
    a("s_waitcnt lgkmcnt(0)")
    srd(a, 32, 16, 17, O_BYTES, O_BASE)
    srd(a, 36, 16, 17, WOT_BYTES, WOT_BASE)
    srd(a, 40, 14, 15, OUT_BYTES)
    for g in range(2):
        a(f"s_add_u32 m0, s27, {g*4096}")
        a(f"s_add_u32 s30, s26, {g*4096}")
        for j in range(4):
            a(f"buffer_load_dwordx4 v2, s[32:35], s30 offen offset:{j*1024} lds")
    for i in range(20):
        if i % 4 == 0: a(f"s_add_u32 s30, s28, {i*1024}")
        a(f"buffer_load_dwordx4 {vr(WF+4*i,4)}, v2, s[36:39], s30 offen offset:{(i%4)*1024}")
    a("v_add_u32 v3, s29, v2")
    a("v_and_b32 v4, 31, v0")
    a("v_mul_u32_u24 v4, 2560, v4")
    a("v_lshrrev_b32 v5, 5, v0")
    a("v_lshl_add_u32 v4, v5, 5, v4")
    a("s_lshl_b32 s44, s21, 1")
    a("s_add_u32 s44, s44, s24")
    a("s_mul_i32 s44, s44, 81920")
    a("s_mul_i32 s45, s20, 1280")
    a("s_add_u32 s44, s44, s45")
    a("s_mul_i32 s45, s22, 320")
    a("s_add_u32 s44, s44, s45")
    a("s_lshl_b32 s45, s25, 6")
    a("s_add_u32 s44, s44, s45")
    a("s_lshl_b32 s46, s23, 12")
    a("s_add_u32 s46, s46, 81920")
    a("v_add_u32 v6, s46, v2")
    a("s_mul_i32 s47, s24, -40960")
    a("s_add_u32 s47, s47, 20480")
    a("v_add_u32 v7, s47, v6")
    a("s_waitcnt vmcnt(20)")
    a("s_barrier")
    def rd(i): return [f"ds_read_b128 {vr(OF+8*(i%3)+4*q,4)}, v3 offset:{q*40960+i*1024}" for q in range(2)]
    for x in rd(0) + rd(1): a(x)
    for i in range(20):
        if i + 2 < 20:
            for x in rd(i+2): a(x)
        left = min(2, 19 - i) * 2
        a(f"s_waitcnt vmcnt({19-i}) lgkmcnt({left})")
        for q in range(2):
            c = vr(ACC+16*q,16) if i else "0"
            a(f"v_mfma_f32_32x32x16_bf16 {vr(ACC+16*q,16)}, {vr(WF+4*i,4)}, {vr(OF+8*(i%3)+4*q,4)}, {c}")
    a("s_cmp_eq_u32 s24, 0")
    a("s_nop 12")
    a(f"s_cbranch_scc0 L_{name}_k1")
    for kh in range(2):
        if kh: a.label(f"L_{name}_k1")
        keep = ACC + 16*kh; send = ACC + 16*(1-kh)
        for j in range(4): a(f"ds_write_b128 v6, {vr(send+4*j,4)} offset:{j*1024}")
        a("s_waitcnt lgkmcnt(0)")
        a("s_barrier")
        for j in range(4): a(f"ds_read_b128 {vr(WF+4*j,4)}, v7 offset:{j*1024}")
        for j in range(4):
            a(f"s_waitcnt lgkmcnt({3-j})")
            for r in range(4): a(f"v_add_f32 v{keep+4*j+r}, v{keep+4*j+r}, v{WF+4*j+r}")
        for i in range(8): a(f"v_cvt_pk_bf16_f32 v{keep+i}, v{keep+2*i}, v{keep+2*i+1}")
        a(f"buffer_store_dwordx4 {vr(keep,4)}, v4, s[40:43], s44 offen")
        a(f"buffer_store_dwordx4 {vr(keep+4,4)}, v4, s[40:43], s44 offen offset:16")
        a("s_endpgm")
    a.label(f"L_{name}_end")
    a("s_endpgm")
    return kd(name, 168)
```

```python
import sys
from common import *
import k1, k2, k3
def build(path, launches=("qkv","attn","oproj")):
    ref = open("concat_heads__mha_block__sliding_block__prompt.s.ref").read().split("\n")
    hdr = [l for l in ref if l.startswith(";") and "@launch" not in l and "Override" not in l and "grid=ceil" not in l]
    L = {"qkv": f"; @launch kernel=qkv_kernel grid=(256,1,1) block=(512,1,1) lds={k1.K1_LDS}",
         "attn": f"; @launch kernel=attn_kernel grid=(256,1,1) block=(512,1,1) lds={k2.K2_LDS}",
         "oproj": f"; @launch kernel=oproj_kernel grid=(256,1,1) block=(640,1,1) lds={k3.K3_LDS}"}
    a = Asm()
    kds = [k1.gen_k1(a), k2.gen_k2(a), k3.gen_k3(a)]
    out = "\n".join(hdr) + "\n" + "\n".join(L[x] for x in launches) + "\n"
    out += '.amdgcn_target "amdgcn-amd-amdhsa--gfx950"\n.text\n' + a.text()
    out += '.section .rodata,"a"\n' + "".join(".p2align 6\n" + k for k in kds)
    open(path, "w").write(out)
if __name__ == "__main__":
    build(sys.argv[1] if len(sys.argv) > 1 else "concat_heads__mha_block__sliding_block__prompt.s")
```
